```python
import torch

def _softmax(x, axis=-1):
    return torch.softmax(x, dim=axis)
def _gelu(x):
    return torch.nn.functional.gelu(x, approximate="tanh")
def _silu(x):
    return torch.nn.functional.silu(x)
def _sigmoid(x):
    return torch.sigmoid(x)
def _layernorm(x, axis=-1, eps=1e-5):
    m = x.mean(dim=axis, keepdim=True)
    v = x.var(dim=axis, keepdim=True, unbiased=False)
    return (x - m) / torch.sqrt(v + eps)
def _scatter_add(tgt, idx, src, axis=0):
    return tgt.clone().index_add_(axis, idx, src)
def _segment_sum(src, seg, n):
    out = torch.zeros((n,) + src.shape[1:], dtype=src.dtype)
    return out.index_add_(0, seg, src)
def _pad(x, pw):
    flat = tuple(v for pair in reversed(pw) for v in pair)
    return torch.nn.functional.pad(x, flat)

kernel_name = 'standalone__mixer_s_mlp__prompt'

def setup_inputs():

    _w = (lambda a: (lambda t: t.to(torch.bfloat16) if t.is_floating_point() else t)(torch.as_tensor(a)))
    B, S, D, F = 1, 2048, 1024, 3584
    return {
        "x":  _w((lambda *s: torch.randn(*s, dtype=torch.bfloat16) * 0.4)(B, S, D)),
        "w1": _w((lambda *s: torch.randn(*s, dtype=torch.bfloat16) * 3.2)(D, D) * (D ** -0.5)),
        "w2": _w((lambda *s: torch.randn(*s, dtype=torch.bfloat16) * 3.2)(D, D) * (D ** -0.5)),
        "w3": _w((lambda *s: torch.randn(*s, dtype=torch.bfloat16) * 3.2)(D, F) * (D ** -0.5)),
        "w4": _w((lambda *s: torch.randn(*s, dtype=torch.bfloat16) * 0.8)(F, D) * (F ** -0.5)),
    }

def reference(x, w1, w2, w3, w4):
    B, S, D = x.shape
    h = _gelu(_layernorm(x, axis=-1) @ w1)
    c = D // 4
    g0 = _pad(h[:, :, 0*c:1*c], ((0, 0), (1, 0), (0, 0)))[:, :S, :]
    g1 = _pad(h[:, :, 1*c:2*c], ((0, 0), (0, 1), (0, 0)))[:, 1:, :]
    g2 = _pad(h[:, :, 2*c:3*c], ((0, 0), (2, 0), (0, 0)))[:, :S, :]
    g3 = _pad(h[:, :, 3*c:   ], ((0, 0), (0, 2), (0, 0)))[:, 2:, :]
    hs = torch.concatenate([g0, g1, g2, g3], axis=-1) @ w2
    x1 = x + hs
    h2 = _gelu(_layernorm(x1, axis=-1) @ w3) @ w4
    return x1 + h2
```

```python
import re

REG_RE = re.compile(r'^(-?)(abs\()?([vas])(?:(\d+)|\[(\d+):(\d+)\])\)?$')

def parse_reg(tok):
    tok = tok.strip()
    if tok in ('vcc',): return [('s', 'vcc')]
    if tok in ('vcc_lo', 'vcc_hi'): return [('s', 'vcc')]
    if tok == 'exec': return [('s', 'exec')]
    if tok == 'm0': return [('s', 'm0')]
    if tok == 'scc': return [('s', 'scc')]
    m = REG_RE.match(tok)
    if not m: return None
    c = m.group(3)
    if m.group(4) is not None:
        return [(c, int(m.group(4)))]
    return [(c, i) for i in range(int(m.group(5)), int(m.group(6)) + 1)]

def split_ops(s):
    out, depth, cur = [], 0, ''
    for ch in s:
        if ch in '[(': depth += 1
        if ch in '])': depth -= 1
        if ch == ',' and depth == 0:
            out.append(cur.strip()); cur = ''
        else:
            cur += ch
    if cur.strip(): out.append(cur.strip())
    return out

TRANS = ('v_exp_f32', 'v_log_f32', 'v_rcp_f32', 'v_rsq_f32', 'v_sqrt_f32', 'v_sin_f32', 'v_cos_f32', 'v_rcp_iflag_f32')
MFMA_PASSES = {
    'v_mfma_f32_32x32x16_bf16': 8, 'v_mfma_f32_16x16x32_bf16': 4, 'v_mfma_f32_4x4x4_16b_bf16': 2,
}
NO_DST = ('s_cmp', 's_waitcnt', 's_barrier', 's_branch', 's_cbranch', 's_nop', 's_endpgm', 's_setprio', 's_sleep',
          's_bitcmp', 'buffer_store', 'global_store', 'ds_write', 'ds_add_f32', 'ds_add_u32', 'buffer_inv', 'buffer_wbl2', 's_sethalt', 's_setreg')

class Ins:
    __slots__ = ('text', 'mn', 'kind', 'rd', 'wr', 'passes', 'srcc', 'srcab', 'nop', 'wide_store_data', 'is_label', 'label', 'target', 'dpp')
    def __init__(self, text):
        self.text = text
        self.is_label = False; self.label = None; self.target = None
        self.passes = 0; self.srcc = []; self.srcab = []; self.nop = 1; self.wide_store_data = []
        self.rd = []; self.wr = []; self.dpp = False
        t = text.split(';')[0].strip()
        if t.endswith(':'):
            self.is_label = True; self.label = t[:-1]; self.kind = 'label'; self.mn = ''; self.nop = 0
            return
        if t.startswith('.') or t == '':
            self.kind = 'dir'; self.mn = ''; self.nop = 0
            return
        parts = t.split(None, 1)
        mn = parts[0]; self.mn = mn
        rest = parts[1] if len(parts) > 1 else ''
        ops = split_ops(rest)
        mods = []
        if ops:
            lastparts = ops[-1].split()
            if len(lastparts) > 1 and not ops[-1].startswith('hwreg') and mn not in ('s_waitcnt',):
                ops[-1] = lastparts[0]; mods = lastparts[1:]
        self.dpp = any(m.startswith(('row_', 'quad_perm', 'wave_', 'row_bcast')) for m in mods) or mn.endswith('_dpp')
        regs = [parse_reg(o) for o in ops]
        if mn.startswith('v_mfma'): self.kind = 'mfma'
        elif mn in TRANS: self.kind = 'trans'
        elif mn.startswith('v_'): self.kind = 'valu'
        elif mn.startswith(('buffer_', 'global_')): self.kind = 'vmem'
        elif mn.startswith('ds_'): self.kind = 'lds'
        elif mn.startswith(('s_load', 's_memtime', 's_memrealtime', 's_buffer_load')): self.kind = 'smem'
        elif mn.startswith('s_'): self.kind = 'salu'
        else: raise ValueError('unknown instr ' + text)
        if mn == 's_nop':
            self.nop = int(ops[0], 0) + 1
        if mn.startswith(('s_branch', 's_cbranch')):
            self.target = ops[0]
        is_lds_dma = self.kind == 'vmem' and 'lds' in mods
        ndst = 1
        if mn.startswith(NO_DST) or is_lds_dma: ndst = 0
        if mn.startswith(('buffer_atomic', 'global_atomic')):
            ndst = 0
            if 'sc0' in mods and mn.startswith('buffer_atomic'):
                self.wr += regs[0] or []
        if mn in ('v_add_co_u32', 'v_sub_co_u32', 'v_addc_co_u32', 'v_subrev_co_u32'): ndst = 2
        for i, r in enumerate(regs):
            if r is None: continue
            if i < ndst: self.wr += r
            else: self.rd += r
        if mn.startswith(('v_fmac', 'v_dot2c', 'v_pk_fmac')): self.rd += regs[0]
        if mn.startswith('v_permlane') and 'swap' in mn:
            self.rd += regs[0]; self.wr += regs[1]
        if mn.startswith('v_cndmask') and len(ops) == 3: self.rd.append(('s', 'vcc'))
        if mn.startswith('v_cmp') and not mn.startswith('v_cmpx'): pass
        if mn in ('v_addc_co_u32',): pass
        if mn.startswith('v_writelane'): self.rd += regs[0]
        if is_lds_dma: self.rd.append(('s', 'm0'))
        if mn.startswith('s_and_saveexec') or mn.startswith('s_or_saveexec'):
            self.wr.append(('s', 'exec')); self.rd.append(('s', 'exec'))
        if self.kind == 'mfma':
            self.passes = MFMA_PASSES[mn]
            self.srcab = (regs[1] or []) + (regs[2] or [])
            self.srcc = regs[3] or []
        if mn.startswith(('buffer_store_dwordx4', 'buffer_store_dwordx3', 'global_store_dwordx4', 'global_store_dwordx3')):
            self.wide_store_data = regs[0] if mn.startswith('buffer') else regs[1]

def is_valu(i): return i.kind in ('valu', 'trans')
def vregs(l): return set(r for r in l if r[0] in 'va')
def sregs(l): return set(r for r in l if r[0] == 's')

def need(prev, cur):
    n = 0
    pw, cr, cw = set(prev.wr), set(cur.rd), set(cur.wr)
    pvw = vregs(prev.wr)
    if is_valu(prev):
        if cur.kind == 'mfma' and pvw & cr: n = max(n, 2)
        psw = sregs(prev.wr)
        if psw:
            if is_valu(cur) and psw & cr:
                n = max(n, 4 if cur.mn.startswith(('v_readlane', 'v_writelane')) else 2)
            if cur.kind == 'vmem' and psw & cr: n = max(n, 5)
            if cur.kind in ('salu', 'smem') and psw & cr: n = max(n, 1)
        if cur.mn.startswith(('v_readlane', 'v_readfirstlane')) and pvw & cr: n = max(n, 1)
        if cur.mn.startswith('v_permlane') and pvw & cr: n = max(n, 2)
        if cur.dpp and pvw & cr: n = max(n, 2)
        if prev.kind == 'trans' and cur.kind != 'trans' and pvw & cr: n = max(n, 1)
        if prev.kind == 'trans' and cur.kind == 'trans' and pvw & cr: n = max(n, 1)
    if prev.kind == 'mfma':
        p = prev.passes
        D = set(prev.wr)
        if cur.kind == 'mfma':
            C = set(cur.srcc)
            if D & C:
                if C == D and cur.passes == p: n = max(n, 2 if p == 2 else 0)
                else: n = max(n, {2: 4, 4: 6, 8: 10, 16: 18}[p])
            if D & set(cur.srcab): n = max(n, {2: 5, 4: 8, 8: 12, 16: 20}[p])
            if D & cw and not (D & C):
                n = max(n, {2: 5, 4: 8, 8: 12, 16: 20}[p])
        elif cur.kind in ('valu', 'trans', 'vmem', 'lds'):
            if D & (cr | cw): n = max(n, {2: 5, 4: 8, 8: 12, 16: 20}[p])
        if is_valu(cur) and set(prev.srcc) & cw: n = max(n, {2: 1, 4: 3, 8: 7, 16: 15}[p])
    if prev.wide_store_data and set(prev.wide_store_data) & cw:
        n = max(n, 2 if is_valu(cur) else 1)
    if prev.kind == 'salu' and ('s', 'm0') in pw and cur.kind == 'vmem' and ('s', 'm0') in cr: n = max(n, 1)
    return n

LOOKBACK = 24

class Prog:
    def __init__(self):
        self.ins = []
    def __call__(self, text):
        for line in text.split('\n'):
            line = line.strip()
            if line: self.ins.append(Ins(line))
    def label(self, name): self.ins.append(Ins(name + ':'))
    def extend(self, other): self.ins += other.ins

    def _deficit(self, hist, cur):
        dist = 0; d = 0
        cnt = 0
        for p in reversed(hist):
            if p.kind in ('label', 'dir'): continue
            r = need(p, cur)
            if r > dist: d = max(d, r - dist)
            dist += p.nop
            cnt += 1
            if dist > LOOKBACK: break
        return d

    def fix_hazards(self):
        out = []
        for i in self.ins:
            if i.kind not in ('label', 'dir'):
                d = self._deficit(out, i)
                while d > 0:
                    k = min(d, 16); out.append(Ins(f's_nop {k-1}')); d -= k
            out.append(i)
        self.ins = out
        changed = True
        it = 0
        while changed and it < 10:
            changed = False; it += 1
            labels = {x.label: n for n, x in enumerate(self.ins) if x.is_label}
            for n, x in enumerate(self.ins):
                if x.target is None or x.target not in labels: continue
                hist = [y for y in self.ins[max(0, n - 40):n + 1]]
                t = labels[x.target]
                walk = list(hist)
                steps = 0
                for k in range(t + 1, min(len(self.ins), t + 60)):
                    y = self.ins[k]
                    if y.kind in ('label', 'dir'): continue
                    d = self._deficit(walk, y)
                    if d > 0:
                        kk = min(d, 16)
                        self.ins.insert(t + 1, Ins(f's_nop {kk-1}'))
                        changed = True
                        break
                    walk.append(y); steps += y.nop
                    if steps > LOOKBACK: break
                    if y.mn in ('s_branch', 's_endpgm'): break
                if changed: break
        return self

    def text(self):
        o = []
        for i in self.ins:
            o.append(i.text if (i.is_label or i.kind == 'dir') else '    ' + i.text)
        return '\n'.join(o) + '\n'

    def count(self):
        from collections import Counter
        return Counter(i.kind for i in self.ins)
```

```python
import sys, math
sys.path.insert(0, 'gen')
from asmlib import *

M, D, F = 2048, 1024, 3584
H_OFF = 0
X1_OFF = 4 << 20
H3_OFF = 8 << 20
ST2_OFF = 24 << 20
CS3_OFF = (24 << 20) + (256 << 10)
WS_SIZE = 268435456

ARG = dict(x=0, w1=8, w2=16, w3=24, w4=32, out=40, dbg=48, ws=56)

LOG2E = 1.4426950408889634
GA = -2.0 * math.sqrt(2.0 / math.pi) * LOG2E
GB = GA * 0.044715

import struct
def f32(x): return '0x%08x' % struct.unpack('<I', struct.pack('<f', x))[0]

class Trk:
    def __init__(self): self.vm = 0; self.lg = 0
    def vmem(self): self.vm += 1; return self.vm
    def lds(self): self.lg += 1; return self.lg

class K:
    def __init__(self, name):
        self.name = name; self.p = Prog(); self.t = Trk()
    def __call__(self, s): self.p(s)
    def vm(self, s):
        self.p(s); return self.t.vmem()
    def lds(self, s):
        self.p(s); return self.t.lds()
    def wait(self, vm=None, lg=None):
        parts = []
        if vm is not None:
            n = self.t.vm - vm
            assert n >= 0
            parts.append(f'vmcnt({min(n, 63)})')
        if lg is not None:
            n = self.t.lg - lg
            assert n >= 0
            parts.append(f'lgkmcnt({min(n, 15)})')
            assert n <= 15, 'lgkm overflow'
        if parts: self.p('s_waitcnt ' + ' '.join(parts))
    def srd(self, d, lo, hi, size, off=None):
        if off is None:
            self(f's_mov_b32 s{d}, s{lo}\ns_and_b32 s{d+1}, s{hi}, 0xffff')
        else:
            self(f's_add_u32 s{d}, s{lo}, {off}\ns_addc_u32 s{d+1}, s{hi}, 0\ns_and_b32 s{d+1}, s{d+1}, 0xffff')
        self(f's_mov_b32 s{d+2}, {size}\ns_mov_b32 s{d+3}, 0x20000')

def header(k, nwg=256):
    k(f'''.p2align 8
.globl {k.name}
.type {k.name},@function
{k.name}:
s_cmp_ge_u32 s2, {nwg}
s_cbranch_scc1 L_{k.name}_end''')

def footer(k, vgpr, agpr, sgpr=96):
    k(f'L_{k.name}_end:\ns_endpgm')
    k.desc = f'''.amdhsa_kernel {k.name}
  .amdhsa_next_free_vgpr {256 + agpr if agpr else vgpr}
  .amdhsa_next_free_sgpr {sgpr}
  .amdhsa_accum_offset {256 if agpr else (vgpr + 3) // 4 * 4}
  .amdhsa_group_segment_fixed_size 0
  .amdhsa_kernarg_size 64
  .amdhsa_user_sgpr_count 2
  .amdhsa_user_sgpr_kernarg_segment_ptr 1
  .amdhsa_system_sgpr_workgroup_id_x 1
.end_amdhsa_kernel'''

S_W, S_I, S_J = 10, 11, 12
def ids(k, mode):
    k(f'''v_lshrrev_b32 v2, 6, v0
v_and_b32 v1, 63, v0
s_and_b32 s13, s2, 7
s_lshr_b32 s14, s2, 3
v_readfirstlane_b32 s{S_W}, v2''')
    if mode == '4x8':
        k(f'''s_lshr_b32 s15, s13, 1
s_lshl_b32 s15, s15, 2
s_lshr_b32 s{S_I}, s14, 3
s_add_u32 s{S_I}, s{S_I}, s15
s_and_b32 s15, s13, 1
s_lshl_b32 s15, s15, 3
s_and_b32 s{S_J}, s14, 7
s_add_u32 s{S_J}, s{S_J}, s15''')
    else:
        k(f'''s_lshr_b32 s15, s13, 2
s_lshl_b32 s15, s15, 3
s_lshr_b32 s{S_I}, s14, 2
s_add_u32 s{S_I}, s{S_I}, s15
s_and_b32 s15, s13, 3
s_lshl_b32 s15, s15, 2
s_and_b32 s{S_J}, s14, 3
s_add_u32 s{S_J}, s{S_J}, s15''')

def b64_voff(k, v, pitch, t0, t1):
    k(f'''v_lshrrev_b32 v{t0}, 3, v1
v_mul_u32_u24 v{t0}, {pitch}, v{t0}
v_lshrrev_b32 v{t1}, 4, v1
v_and_b32 v{t1}, 1, v{t1}
v_lshlrev_b32 v{t1}, 2, v{t1}
v_and_b32 v{v}, 7, v1
v_xor_b32 v{v}, v{v}, v{t1}
v_lshlrev_b32 v{v}, 4, v{v}
v_add_u32 v{v}, v{v}, v{t0}''')

def b64_tr_addr(k, v0, v1_, hfrows, base, t0, t1, t2):
    k(f'''v_lshrrev_b32 v{t0}, 5, v1
v_mul_u32_u24 v{t0}, {hfrows}, v{t0}
v_bfe_u32 v{t1}, v1, 2, 2
v_add_u32 v{t0}, v{t0}, v{t1}
v_lshlrev_b32 v{t0}, 7, v{t0}
v_bfe_u32 v{t1}, v1, 4, 1
v_lshlrev_b32 v{t1}, 1, v{t1}
v_bfe_u32 v{t2}, v1, 1, 1
v_add_u32 v{t1}, v{t1}, v{t2}
v_bfe_u32 v{t2}, v1, 3, 1
v_lshlrev_b32 v{t2}, 2, v{t2}
v_add_u32 v{t1}, v{t1}, v{t2}
v_lshlrev_b32 v{t1}, 4, v{t1}
v_add_u32 v{t0}, v{t0}, v{t1}
v_and_b32 v{t1}, 1, v1
v_lshlrev_b32 v{t1}, 3, v{t1}
v_add_u32 v{v0}, v{t0}, v{t1}''')
    if base: k(f'v_add_u32 v{v0}, {base}, v{v0}')
    k(f'v_xor_b32 v{v1_}, 64, v{v0}')

def rowmaj_voff(k, va, vb, t0, t1):
    k(f'''v_lshrrev_b32 v{t0}, 3, v1
v_lshlrev_b32 v{t0}, 11, v{t0}
v_lshrrev_b32 v{t1}, 4, v1
v_and_b32 v{va}, 7, v1
v_xor_b32 v{va}, v{va}, v{t1}
v_xor_b32 v{vb}, 4, v{va}
v_lshlrev_b32 v{va}, 4, v{va}
v_lshlrev_b32 v{vb}, 4, v{vb}
v_add_u32 v{va}, v{va}, v{t0}
v_add_u32 v{vb}, v{vb}, v{t0}''')

def vr(b, n=4): return f'v[{b}:{b+n-1}]'
def ar(b, n=4): return f'a[{b}:{b+n-1}]'
def sr(b, n=4): return f's[{b}:{b+n-1}]'

def mfma(d, a, b, c=None):
    return f'v_mfma_f32_32x32x16_bf16 {d}, {a}, {b}, {c if c is not None else d}'
def mfma4(d, a, b):
    return f'v_mfma_f32_4x4x4_16b_bf16 {d}, {a}, {b}, {d}'

def half_sum(k, v, t):
    k(f'''v_mov_b32 v{t}, v{v}
v_permlane32_swap_b32 v{v}, v{t}
v_add_f32 v{v}, v{v}, v{t}''')

def gelu_pairs(k, pairs, cs, nmean, rstd, cA, cB, cOne, tmp, outs, group=4):
    for g0 in range(0, len(pairs), group):
        grp = list(range(g0, min(g0 + group, len(pairs))))
        X = {i: tmp + 4 * (i - g0) for i in grp}
        Q = {i: tmp + 4 * (i - g0) + 2 for i in grp}
        for i in grp: k(f'v_pk_fma_f32 {vr(X[i],2)}, {vr(cs[i],2)}, {vr(nmean,2)}, {vr(pairs[i],2)} op_sel_hi:[1,0,1]')
        for i in grp: k(f'v_pk_mul_f32 {vr(X[i],2)}, {vr(X[i],2)}, {vr(rstd,2)} op_sel_hi:[1,0]')
        for i in grp: k(f'v_pk_mul_f32 {vr(Q[i],2)}, {vr(X[i],2)}, {vr(X[i],2)}')
        for i in grp: k(f'v_pk_fma_f32 {vr(Q[i],2)}, {vr(Q[i],2)}, {vr(cB,2)}, {vr(cA,2)} op_sel_hi:[1,0,0]')
        for i in grp: k(f'v_pk_mul_f32 {vr(Q[i],2)}, {vr(Q[i],2)}, {vr(X[i],2)}')
        for i in grp: k(f'v_exp_f32 v{Q[i]}, v{Q[i]}\nv_exp_f32 v{Q[i]+1}, v{Q[i]+1}')
        for i in grp: k(f'v_pk_add_f32 {vr(Q[i],2)}, {vr(Q[i],2)}, {vr(cOne,2)} op_sel_hi:[1,0]')
        for i in grp: k(f'v_rcp_f32 v{Q[i]}, v{Q[i]}\nv_rcp_f32 v{Q[i]+1}, v{Q[i]+1}')
        for i in grp: k(f'v_pk_mul_f32 {vr(X[i],2)}, {vr(X[i],2)}, {vr(Q[i],2)}')
        for i in grp: k(f'v_cvt_pk_bf16_f32 v{outs[i]}, v{X[i]}, v{X[i]+1}')

class ADirect:
    def __init__(self, k, NB, nstages, R, DA, DW, acc, wfr, trv, a_srd, b_srd, sA, dma_issue, tr_off, body_stages=None, filler=None, skip_oob=False):
        self.__dict__.update(locals())
        self.a_tok = {}; self.b_tok = {}; self.w_tok = {}
    def a_load(self, t):
        k = self.k
        slot = t % self.DA
        self.a_tok[t] = k.vm(f'buffer_load_dwordx4 {ar(4*slot)}, v2, {sr(self.a_srd)}, s{self.sA} offen offset:{(t%4)*1024}')
        if t % 4 == 3: k(f's_add_u32 s{self.sA}, s{self.sA}, 4096')
    def w_read(self, t, nb):
        k = self.k
        s, u = divmod(t, 4)
        base = self.wfr + ((t % self.DW) * self.NB + nb) * 4
        for h in range(2):
            v, off = self.tr_off(s % self.R, u, nb, h)
            tok = k.lds(f'ds_read_b64_tr_b16 {vr(base+2*h,2)}, v{v} offset:{off}')
        self.w_tok[(t, nb)] = tok
    def wreg(self, t, nb): return vr(self.wfr + ((t % self.DW) * self.NB + nb) * 4)
    def prologue(self):
        k = self.k
        na = 0
        for s in range(self.R - 1):
            self.b_tok[s] = self.dma_issue(s)
            for _ in range(4):
                if na < self.DA: self.a_load(na); na += 1
        while na < self.DA: self.a_load(na); na += 1
    def first_reads(self):
        k = self.k
        k.wait(vm=self.b_tok[0]); k('s_barrier')
        for t in range(self.DW):
            for nb in range(self.NB): self.w_read(t, nb)
    def stage(self, s):
        k = self.k
        last = self.skip_oob
        if not (last and s + 1 >= self.nstages):
            k.wait(vm=self.b_tok[s + 1])
        k('s_barrier')
        if not (last and s + self.R - 1 >= self.nstages):
            self.b_tok[s + self.R - 1] = self.dma_issue(s + self.R - 1)
        for u in range(4):
            t = 4 * s + u
            for nb in range(self.NB):
                if nb == 0: k.wait(vm=self.a_tok[t], lg=self.w_tok[(t, nb)])
                else: k.wait(lg=self.w_tok[(t, nb)])
                d = vr(self.acc + 16 * nb, 16)
                k(mfma(d, self.wreg(t, nb), ar(4 * (t % self.DA))))
                if not (last and t + self.DW >= 4 * self.nstages): self.w_read(t + self.DW, nb)
                if nb == self.NB - 1 and not (last and t + self.DA >= 4 * self.nstages): self.a_load(t + self.DA)
            if self.filler: self.filler(t)

def merge_iters(progs):
    base = progs[0]
    out = Prog()
    import re as _re
    for n, i in enumerate(base.ins):
        if i.mn == 's_waitcnt':
            vm = []; lg = []
            for q in progs:
                j = q.ins[n]; assert j.mn == 's_waitcnt'
                m = _re.search(r'vmcnt\((\d+)\)', j.text); vm.append(int(m.group(1)) if m else None)
                m = _re.search(r'lgkmcnt\((\d+)\)', j.text); lg.append(int(m.group(1)) if m else None)
            parts = []
            if any(v is not None for v in vm): parts.append(f'vmcnt({min(v for v in vm if v is not None)})')
            if any(v is not None for v in lg): parts.append(f'lgkmcnt({min(v for v in lg if v is not None)})')
            out('s_waitcnt ' + ' '.join(parts))
        else:
            for q in progs: assert q.ins[n].text == i.text, (q.ins[n].text, i.text)
            out.ins.append(i)
    return out

def gen_k4():
    k = K('k4_kernel'); header(k)
    k(f'''s_load_dwordx2 s[4:5], s[0:1], {ARG['w4']}
s_load_dwordx2 s[6:7], s[0:1], {ARG['out']}
s_load_dwordx2 s[8:9], s[0:1], {ARG['ws']}''')
    ids(k, '4x8')
    R, DA, DW, NST = 14, 28, 2, 56
    k('v_lshlrev_b32 v2, 4, v1')
    b64_voff(k, 3, 2048, 8, 9)
    b64_tr_addr(k, 4, 5, 4, 0, 8, 9, 10)
    k('v_add_u32 v6, 0x10000, v4\nv_add_u32 v7, 0x10000, v5')
    k(f's_lshl_b32 s13, s{S_I}, 2\ns_add_u32 s13, s13, s{S_W}')
    k('s_waitcnt lgkmcnt(0)')
    k(f's_mul_i32 s14, s13, {224*1024}\ns_add_u32 s14, s14, {H3_OFF}')
    k.srd(16, 8, 9, 224 * 1024, 's14')
    k(f's_lshl_b32 s14, s{S_J}, 7')
    k(f's_sub_u32 s15, {F*D*2}, s14')
    k.srd(20, 4, 5, 's15', 's14')
    k(f's_lshl_b32 s14, s13, 16\ns_lshl_b32 s15, s{S_J}, 12\ns_add_u32 s14, s14, s15\ns_add_u32 s14, s14, {X1_OFF}')
    k.srd(24, 8, 9, 4096, 's14')
    k.srd(28, 6, 7, M * D * 2)
    XR = 80
    for q in range(4): k.vm(f'buffer_load_dwordx4 {vr(XR+4*q)}, v2, {sr(24)}, 0 offen offset:{q*1024}')
    k(f's_mov_b32 s32, 0')
    k(f's_lshl_b32 s33, s{S_W}, 15\ns_add_u32 s34, s33, 16384')
    k(f's_lshl_b32 s35, s{S_W}, 11')
    def dma(s):
        slot = s % R
        k(f's_add_u32 m0, s35, {slot*8192}')
        k.vm(f'buffer_load_dwordx4 v3, {sr(20)}, s33 offen lds')
        k(f's_add_u32 m0, s35, {slot*8192+1024}')
        tok = k.vm(f'buffer_load_dwordx4 v3, {sr(20)}, s34 offen lds')
        k(f's_add_u32 s33, s33, {64*2048}\ns_add_u32 s34, s34, {64*2048}')
        return tok
    def tr_off(slot, u, nb, h):
        off = slot * 8192 + u * 2048 + h * 1024
        v = 4 + nb
        if off >= 65536: off -= 65536; v += 2
        return v, off
    g = ADirect(k, NB=2, nstages=NST, R=R, DA=DA, DW=DW, acc=32, wfr=64, trv=None, a_srd=16, b_srd=20, sA=32, dma_issue=dma, tr_off=tr_off)
    g.prologue()
    for r in range(32): k(f'v_mov_b32 v{32+r}, 0')
    g.first_reads()
    main = k.p
    bodies = []
    for it in range(NST // R):
        k.p = Prog()
        for s in range(it * R, (it + 1) * R): g.stage(s)
        bodies.append(k.p)
    k.p = main
    k(f's_mov_b32 s36, {NST//R}')
    k.p.label('L_k4_loop')
    k.p.extend(merge_iters(bodies))
    k('s_sub_u32 s36, s36, 1\ns_cmp_lg_u32 s36, 0\ns_cbranch_scc1 L_k4_loop')
    k(f'''v_and_b32 v8, 31, v1
v_lshlrev_b32 v8, 11, v8
v_lshrrev_b32 v9, 5, v1
v_lshlrev_b32 v9, 4, v9
v_add_u32 v8, v8, v9
s_lshl_b32 s14, s13, 16
s_lshl_b32 s15, s{S_J}, 7
s_add_u32 s14, s14, s15''')
    T = 96
    for nb in range(2):
        for e in range(8):
            xr = XR + 8 * nb + e
            a = 32 + 16 * nb + 2 * e
            k(f'''v_lshlrev_b32 v{T}, 16, v{xr}
v_and_b32 v{T+1}, 0xffff0000, v{xr}
v_pk_add_f32 {vr(a,2)}, {vr(a,2)}, {vr(T,2)}
v_cvt_pk_bf16_f32 v{xr}, v{a}, v{a+1}''')
        P = XR + 8 * nb
        k(f'''v_permlane32_swap_b32 v{P}, v{P+2}
v_permlane32_swap_b32 v{P+1}, v{P+3}
v_permlane32_swap_b32 v{P+4}, v{P+6}
v_permlane32_swap_b32 v{P+5}, v{P+7}''')
        k.vm(f'buffer_store_dwordx4 {vr(P)}, v8, {sr(28)}, s14 offen offset:{nb*64}')
        k.vm(f'buffer_store_dwordx4 {vr(P+4)}, v8, {sr(28)}, s14 offen offset:{nb*64+32}')
    footer(k, 256, 112)
    k.lds_bytes = R * 8192
    return k

def gen_k2():
    k = K('k2_kernel'); header(k)
    k(f'''s_load_dwordx2 s[4:5], s[0:1], {ARG['w2']}
s_load_dwordx2 s[6:7], s[0:1], {ARG['x']}
s_load_dwordx2 s[8:9], s[0:1], {ARG['ws']}
s_load_dwordx2 s[40:41], s[0:1], {ARG['w3']}''')
    ids(k, '4x8')
    R, DA, DW, NST = 14, 24, 2, 16
    XT = R * 8192
    CSL = XT + 16384
    k('v_lshlrev_b32 v2, 4, v1')
    b64_voff(k, 3, 2048, 8, 9)
    b64_tr_addr(k, 4, 5, 4, 0, 8, 9, 10)
    k('v_add_u32 v6, 0x10000, v4\nv_add_u32 v7, 0x10000, v5')
    rowmaj_voff(k, 12, 13, 8, 9)
    k(f's_lshl_b32 s13, s{S_I}, 2\ns_add_u32 s13, s13, s{S_W}')
    k(f'''v_lshlrev_b32 v8, 2, v0
v_add_u32 v8, {CSL}, v8
v_mov_b32 v9, 0
ds_write_b32 v8, v9''')
    k.t.lds()
    k('s_waitcnt lgkmcnt(0)')
    k(f's_lshl_b32 s14, s13, 16\ns_add_u32 s14, s14, {H_OFF}' if H_OFF else f's_lshl_b32 s14, s13, 16')
    k.srd(16, 8, 9, 65536, 's14')
    k(f's_lshl_b32 s14, s{S_J}, 7')
    k(f's_sub_u32 s15, {D*D*2}, s14')
    k.srd(20, 4, 5, 's15', 's14')
    k.srd(24, 6, 7, M * D * 2)
    k.srd(28, 8, 9, WS_SIZE)
    k.srd(44, 40, 41, D * F * 2)
    k(f's_mov_b32 s32, 0')
    k(f's_lshl_b32 s33, s{S_W}, 15\ns_add_u32 s34, s33, 16384')
    k(f's_lshl_b32 s35, s{S_W}, 11')
    def dma(s):
        slot = s % R
        k(f's_add_u32 m0, s35, {slot*8192}')
        k.vm(f'buffer_load_dwordx4 v3, {sr(20)}, s33 offen lds')
        k(f's_add_u32 m0, s35, {slot*8192+1024}')
        tok = k.vm(f'buffer_load_dwordx4 v3, {sr(20)}, s34 offen lds')
        k(f's_add_u32 s33, s33, {64*2048}\ns_add_u32 s34, s34, {64*2048}')
        return tok
    def tr_off(slot, u, nb, h):
        off = slot * 8192 + u * 2048 + h * 1024
        v = 4 + nb
        if off >= 65536: off -= 65536; v += 2
        return v, off
    SJ = 112
    SACC = 144
    IDB = 152
    st = {}
    def filler(t):
        if t == 24:
            k.wait(vm=st['w3'])
            for q in range(8):
                k(mfma4(vr(SACC), vr(SJ + 4 * q, 2), vr(IDB, 2)))
                k(mfma4(vr(SACC + 4), vr(SJ + 4 * q + 2, 2), vr(IDB, 2)))
        if t == 26:
            for i in range(4):
                k.lds(f'ds_add_f32 v14, v{SACC+i} offset:{i*32}')
                k.lds(f'ds_add_f32 v14, v{SACC+4+i} offset:{i*32+16}')
            k('s_waitcnt lgkmcnt(0)')
        if t == 33:
            k(f'''v_lshlrev_b32 v15, 2, v0
v_add_u32 v16, {CSL}, v15
ds_read_b32 v17, v16''')
            k.t.lds()
            k(f'''s_lshr_b32 s48, s2, 4
s_and_b32 s49, s2, 15
s_mul_i32 s48, s48, {F*4}
s_mul_i32 s49, s49, 896
s_add_u32 s48, s48, s49
s_add_u32 s48, s48, {CS3_OFF}
v_cmp_gt_u32 vcc, 224, v0
v_mov_b32 v18, 0x7ffffff0
v_cndmask_b32 v15, v18, v15, vcc
s_waitcnt lgkmcnt(0)''')
            k.vm(f'buffer_store_dword v17, v15, {sr(28)}, s48 offen')
    g = ADirect(k, NB=2, nstages=NST, R=R, DA=DA, DW=DW, acc=32, wfr=64, trv=None, a_srd=16, b_srd=20, sA=32, dma_issue=dma, tr_off=tr_off, filler=filler, skip_oob=True)
    g.prologue()
    k(f's_lshl_b32 s36, s13, 16\ns_lshl_b32 s37, s{S_J}, 7\ns_add_u32 s36, s36, s37')
    k(f's_lshl_b32 s37, s{S_W}, 12\ns_add_u32 s37, s37, {XT}')
    for q in range(4):
        k(f's_add_u32 m0, s37, {q*1024}\ns_add_u32 s38, s36, {q*16384}')
        xt_tok = k.vm(f'buffer_load_dwordx4 v{12+(q&1)}, {sr(24)}, s38 offen lds')
    k(f'''v_cmp_le_u32 vcc, 28, v1
v_mov_b32 v8, 0
v_mov_b32 v9, 28
v_cndmask_b32 v9, v8, v9, vcc
v_sub_u32 v10, v1, v9
v_lshlrev_b32 v10, 4, v10
v_mov_b32 v9, 7168
v_cndmask_b32 v9, v8, v9, vcc
v_add_u32 v10, v10, v9
v_cmp_gt_u32 vcc, 56, v1
v_mov_b32 v9, 0x7ffffff0
v_cndmask_b32 v10, v9, v10, vcc
s_lshr_b32 s48, s2, 4
s_and_b32 s49, s2, 15
s_lshl_b32 s48, s48, 6
s_lshl_b32 s50, s{S_W}, 4
s_add_u32 s48, s48, s50
s_mul_i32 s48, s48, 7168
s_mul_i32 s49, s49, 448
s_add_u32 s48, s48, s49''')
    for q in range(8):
        st['w3'] = k.vm(f'buffer_load_dwordx4 {vr(SJ+4*q)}, v10, {sr(44)}, s48 offen')
        k('s_add_u32 s48, s48, 14336')
    k(f'''v_and_b32 v8, 3, v1
v_and_b32 v9, 1, v1
v_lshlrev_b32 v9, 4, v9
v_mov_b32 v11, 0x3f80
v_lshlrev_b32 v11, v9, v11
v_mov_b32 v9, 0
v_cmp_gt_u32 vcc, 2, v8
v_cndmask_b32 v{IDB}, v9, v11, vcc
v_cndmask_b32 v{IDB+1}, v11, v9, vcc
v_and_b32 v9, 60, v1
v_cmp_le_u32 vcc, 28, v9
v_mov_b32 v11, 28
v_mov_b32 v14, 0
v_cndmask_b32 v11, v14, v11, vcc
v_sub_u32 v9, v9, v11
v_cmp_le_u32 vcc, 28, v9
v_mov_b32 v11, 28
v_cndmask_b32 v11, v14, v11, vcc
v_sub_u32 v9, v9, v11
v_lshlrev_b32 v9, 3, v9
v_add_u32 v9, v9, v8
v_lshlrev_b32 v9, 2, v9
v_add_u32 v14, {CSL}, v9''')
    for r in range(8): k(f'v_mov_b32 v{SACC+r}, 0')
    for r in range(32): k(f'v_mov_b32 v{32+r}, 0')
    g.first_reads()
    for s in range(NST): g.stage(s)
    XR = 80; T = 96
    k(f'''v_and_b32 v8, 31, v1
v_lshlrev_b32 v9, 7, v8
v_bfe_u32 v10, v1, 1, 3
v_and_b32 v11, 31, v1
v_lshrrev_b32 v11, 1, v11
v_and_b32 v11, 7, v11
v_lshlrev_b32 v11, 4, v11
v_add_u32 v9, v9, v11
v_lshrrev_b32 v11, 5, v1
v_lshlrev_b32 v11, 3, v11
v_add_u32 v9, v9, v11
v_add_u32 v9, s37, v9''')
    k.wait(vm=xt_tok)
    for c in range(8):
        k(f'v_xor_b32 v10, {c*16}, v9')
        k.lds(f'ds_read_b64 {vr(XR+2*c,2)}, v10')
    k('s_waitcnt lgkmcnt(0)')
    SUM, SQ = 100, 102
    k(f'v_mov_b32 v{SUM}, 0\nv_mov_b32 v{SUM+1}, 0\nv_mov_b32 v{SQ}, 0\nv_mov_b32 v{SQ+1}, 0')
    for e in range(16):
        xr = XR + e; a = 32 + 2 * e
        k(f'''v_lshlrev_b32 v{T}, 16, v{xr}
v_and_b32 v{T+1}, 0xffff0000, v{xr}
v_pk_add_f32 {vr(a,2)}, {vr(a,2)}, {vr(T,2)}
v_cvt_pk_bf16_f32 v{xr}, v{a}, v{a+1}
v_pk_add_f32 {vr(SUM,2)}, {vr(SUM,2)}, {vr(a,2)}
v_pk_fma_f32 {vr(SQ,2)}, {vr(a,2)}, {vr(a,2)}, {vr(SQ,2)}''')
    k(f's_lshl_b32 s14, s13, 16\ns_lshl_b32 s15, s{S_J}, 12\ns_add_u32 s14, s14, s15\ns_add_u32 s14, s14, {X1_OFF}')
    for q in range(4): k.vm(f'buffer_store_dwordx4 {vr(XR+4*q)}, v2, {sr(28)}, s14 offen offset:{q*1024}')
    k(f'v_add_f32 v{SUM}, v{SUM}, v{SUM+1}\nv_add_f32 v{SQ}, v{SQ}, v{SQ+1}')
    half_sum(k, SUM, T); half_sum(k, SQ, T + 1)
    k(f'v_mov_b32 v{SUM+1}, v{SQ}')
    k(f'''v_lshlrev_b32 v8, 3, v1
v_cmp_gt_u32 vcc, 32, v1
v_mov_b32 v9, 0x7ffffff0
v_cndmask_b32 v8, v9, v8, vcc
s_lshl_b32 s14, s{S_J}, 14
s_lshl_b32 s15, s13, 8
s_add_u32 s14, s14, s15
s_add_u32 s14, s14, {ST2_OFF}''')
    k.vm(f'buffer_store_dwordx2 {vr(SUM,2)}, v8, {sr(28)}, s14 offen')
    footer(k, 256, 4 * DA)
    k.lds_bytes = CSL + 1024
    return k

def gen_k3():
    k = K('k3_kernel'); header(k)
    k(f'''s_load_dwordx2 s[4:5], s[0:1], {ARG['w3']}
s_load_dwordx2 s[8:9], s[0:1], {ARG['ws']}''')
    ids(k, '8x4')
    R, DA, DW, NST, NB = 5, 16, 1, 16, 7
    SB = 28672
    CSL = R * SB
    k('v_lshlrev_b32 v2, 4, v1')
    for i in range(7):
        k(f'''v_add_u32 v10, {64*i}, v1
v_mul_u32_u24 v11, 2341, v10
v_lshrrev_b32 v11, 16, v11
v_mul_u32_u24 v12, 28, v11
v_sub_u32 v10, v10, v12
v_lshlrev_b32 v10, 4, v10
v_mul_u32_u24 v11, 7168, v11
v_add_u32 v{3+i}, v10, v11''')
    k(f'''v_lshrrev_b32 v10, 5, v1
v_lshlrev_b32 v10, 2, v10
v_bfe_u32 v11, v1, 2, 2
v_add_u32 v10, v10, v11
v_mul_u32_u24 v10, 448, v10
v_bfe_u32 v11, v1, 4, 1
v_lshlrev_b32 v11, 5, v11
v_add_u32 v10, v10, v11
v_and_b32 v11, 3, v1
v_lshlrev_b32 v11, 3, v11
v_add_u32 v13, v10, v11
v_add_u32 v14, {2*SB}, v13
v_add_u32 v15, {4*SB}, v13''')
    k(f's_lshl_b32 s13, s{S_I}, 2\ns_add_u32 s13, s13, s{S_W}')
    k('s_waitcnt lgkmcnt(0)')
    k(f's_lshl_b32 s14, s13, 16\ns_add_u32 s14, s14, {X1_OFF}')
    k.srd(16, 8, 9, 65536, 's14')
    k(f's_mul_i32 s14, s{S_J}, 448')
    k(f's_sub_u32 s15, {D*F*2}, s14')
    k.srd(20, 4, 5, 's15', 's14')
    k.srd(28, 8, 9, WS_SIZE)
    STT = 176
    k(f'''v_and_b32 v10, 31, v1
v_lshlrev_b32 v10, 3, v10
v_lshrrev_b32 v11, 5, v1
v_lshlrev_b32 v11, 17, v11
v_add_u32 v10, v10, v11
s_lshl_b32 s14, s13, 8
s_add_u32 s14, s14, {ST2_OFF}''')
    for jj in range(8):
        st_tok = k.vm(f'buffer_load_dwordx2 {vr(STT+2*jj,2)}, v10, {sr(28)}, s14 offen')
        k('s_add_u32 s14, s14, 16384')
    CST = 192
    k(f'''v_lshlrev_b32 v11, 2, v0
v_cmp_gt_u32 vcc, 224, v0
v_mov_b32 v12, 0x7ffffff0
v_cndmask_b32 v12, v12, v11, vcc
s_mul_i32 s14, s{S_J}, 896
s_add_u32 s14, s14, {CS3_OFF}''')
    for a in range(16):
        cs_tok = k.vm(f'buffer_load_dword v{CST+a}, v12, {sr(28)}, s14 offen')
        k(f's_add_u32 s14, s14, {F*4}')
    k(f's_mov_b32 s32, 0')
    k(f's_mul_i32 s33, s{S_W}, {16*7168}')
    k(f's_mul_i32 s35, s{S_W}, 7168')
    def dma(s):
        slot = s % R
        for i in range(7):
            k(f's_add_u32 m0, s35, {slot*SB + i*1024}')
            tok = k.vm(f'buffer_load_dwordx4 v{3+i}, {sr(20)}, s33 offen lds')
        k(f's_add_u32 s33, s33, {64*7168}')
        return tok
    def tr_off(slot, u, nb, h):
        off = (slot % 2) * SB + u * 7168 + nb * 64 + h * 3584
        return 13 + slot // 2, off
    ACC, WFR = 32, 144
    g = ADirect(k, NB=NB, nstages=NST, R=R, DA=DA, DW=DW, acc=ACC, wfr=WFR, trv=None, a_srd=16, b_srd=20, sA=32, dma_issue=dma, tr_off=tr_off, skip_oob=True)
    g.prologue()
    for r in range(16 * NB): k(f'v_mov_b32 v{ACC+r}, 0')
    k.wait(vm=cs_tok)
    for a in range(1, 16): k(f'v_add_f32 v{CST}, v{CST}, v{CST+a}')
    k(f'v_add_u32 v11, {CSL}, v11')
    k.lds(f'ds_write_b32 v11, v{CST}')
    for jj in range(1, 8): k(f'v_pk_add_f32 {vr(STT,2)}, {vr(STT,2)}, {vr(STT+2*jj,2)}')
    half_sum(k, STT, STT + 2); half_sum(k, STT + 1, STT + 3)
    NMEAN, RSTD, CA, CB, CONE = 172, 174, 208, 210, 212
    k(f'''v_mul_f32 v{STT}, {f32(1.0/1024)}, v{STT}
v_mul_f32 v{STT+1}, {f32(1.0/1024)}, v{STT+1}
v_fma_f32 v{STT+1}, -v{STT}, v{STT}, v{STT+1}
v_add_f32 v{STT+1}, {f32(1e-5)}, v{STT+1}
v_rsq_f32 v{RSTD}, v{STT+1}
v_sub_f32 v{NMEAN}, 0, v{STT}
v_mov_b32 v{CA}, {f32(GA)}
v_mov_b32 v{CB}, {f32(GB)}
v_mov_b32 v{CONE}, 1.0''')
    k('s_waitcnt lgkmcnt(0)')
    g.first_reads()
    for s in range(NST): g.stage(s)
    k(f'''v_lshrrev_b32 v10, 5, v1
v_lshlrev_b32 v10, 4, v10
v_add_u32 v10, {CSL}, v10''')
    k(f's_mul_i32 s14, s13, {224*1024}\ns_mul_i32 s15, s{S_J}, {14*1024}\ns_add_u32 s14, s14, s15\ns_add_u32 s14, s14, {H3_OFF}')
    CS = 176
    OUT = 216
    TMP = 232
    def cs_read(nb):
        b = CS + 16 * (nb & 1)
        for gq in range(4): tok = k.lds(f'ds_read_b128 {vr(b+4*gq)}, v10 offset:{nb*128 + gq*32}')
        return tok
    tok = cs_read(0)
    for nb in range(NB):
        nxt = cs_read(nb + 1) if nb + 1 < NB else None
        k.wait(lg=tok)
        b = CS + 16 * (nb & 1); o = OUT + 8 * (nb & 1)
        gelu_pairs(k, [ACC + 16 * nb + 2 * e for e in range(8)], [b + 2 * e for e in range(8)], NMEAN, RSTD, CA, CB, CONE, TMP, [o + e for e in range(8)])
        k.vm(f'buffer_store_dwordx4 {vr(o)}, v2, {sr(28)}, s14 offen')
        k.vm(f'buffer_store_dwordx4 {vr(o+4)}, v2, {sr(28)}, s14 offen offset:1024')
        k('s_add_u32 s14, s14, 2048')
        tok = nxt
    footer(k, 256, 4 * DA)
    k.lds_bytes = CSL + 1024
    return k

def gen_k1():
    k = K('k1_kernel'); header(k)
    k(f'''s_load_dwordx2 s[4:5], s[0:1], {ARG['w1']}
s_load_dwordx2 s[6:7], s[0:1], {ARG['x']}
s_load_dwordx2 s[8:9], s[0:1], {ARG['ws']}''')
    ids(k, '4x8')
    RA, RB, DW, NST = 6, 7, 2, 16
    BB = RA * 16384
    CSL = BB + RB * 8192
    b64_voff(k, 3, 2048, 8, 9)
    b64_tr_addr(k, 4, 5, 8, BB, 8, 9, 10)
    rowmaj_voff(k, 12, 13, 8, 9)
    k(f'''v_and_b32 v8, 31, v1
v_lshlrev_b32 v9, 7, v8
v_bfe_u32 v10, v1, 1, 3
v_and_b32 v10, 7, v10
v_lshrrev_b32 v8, 1, v8
v_and_b32 v8, 7, v8
v_lshrrev_b32 v10, 5, v1
v_xor_b32 v8, v8, v10
v_lshlrev_b32 v8, 4, v8
v_add_u32 v9, v9, v8
s_lshl_b32 s13, s{S_W}, 12
v_add_u32 v16, s13, v9
v_xor_b32 v17, 32, v16
v_xor_b32 v18, 64, v16
v_xor_b32 v19, 96, v16
v_add_u32 v20, 0x10000, v16
v_add_u32 v21, 0x10000, v17
v_add_u32 v22, 0x10000, v18
v_add_u32 v23, 0x10000, v19''')
    k(f's_lshl_b32 s13, s{S_I}, 2\ns_add_u32 s13, s13, s{S_W}')
    k('s_waitcnt lgkmcnt(0)')
    k(f's_lshl_b32 s14, s13, 16')
    k.srd(16, 6, 7, 65536, 's14')
    k(f's_lshl_b32 s14, s{S_J}, 7')
    k(f's_sub_u32 s15, {D*D*2}, s14')
    k.srd(20, 4, 5, 's15', 's14')
    k.srd(28, 8, 9, WS_SIZE)
    k(f's_mov_b32 s32, 0')
    k(f's_lshl_b32 s33, s{S_W}, 15\ns_add_u32 s34, s33, 16384')
    k(f's_lshl_b32 s35, s{S_W}, 11\ns_add_u32 s35, s35, {BB}')
    k(f's_lshl_b32 s36, s{S_W}, 12')
    def dma_b(s):
        slot = s % RB
        k(f's_add_u32 m0, s35, {slot*8192}')
        k.vm(f'buffer_load_dwordx4 v3, {sr(20)}, s33 offen lds')
        k(f's_add_u32 m0, s35, {slot*8192+1024}')
        tok = k.vm(f'buffer_load_dwordx4 v3, {sr(20)}, s34 offen lds')
        k(f's_add_u32 s33, s33, {64*2048}\ns_add_u32 s34, s34, {64*2048}')
        return tok
    def dma_a(s):
        slot = s % RA
        if s >= NST: return None
        for q in range(4):
            k(f's_add_u32 m0, s36, {slot*16384 + q*1024}\ns_add_u32 s37, s32, {q*16384}')
            tok = k.vm(f'buffer_load_dwordx4 v{12+(q&1)}, {sr(16)}, s37 offen lds')
        k('s_add_u32 s32, s32, 128')
        return tok
    ACC, AFR, WFR = 32, 64, 72
    S1, S2, C0 = 88, 96, 104
    ONES = 120
    atok = {}; btok = {}; rtok = {}
    def reads(t):
        s, u = divmod(t, 4)
        sl = s % RA
        v = 16 + u + (4 if sl >= 4 else 0)
        off = (sl % 4) * 16384
        rtok[(t, 'a')] = k.lds(f'ds_read_b128 {vr(AFR+4*(t%DW))}, v{v} offset:{off}')
        for nb in range(2):
            for h in range(2):
                tok = k.lds(f'ds_read_b64_tr_b16 {vr(WFR+8*(t%DW)+4*nb+2*h,2)}, v{4+nb} offset:{(s%RB)*8192 + u*2048 + h*512}')
            rtok[(t, nb)] = tok
    for s in range(max(RA, RB) - 1):
        if s < RB - 1: btok[s] = dma_b(s)
        if s < RA - 1: atok[s] = dma_a(s)
    for r in range(32): k(f'v_mov_b32 v{ACC+r}, 0')
    for r in range(S1, C0 + 16): k(f'v_mov_b32 v{r}, 0')
    k(f'v_mov_b32 v{ONES}, 0x3f803f80\nv_mov_b32 v{ONES+1}, 0x3f803f80')
    k.wait(vm=max(atok[0], btok[0])); k('s_barrier')
    for t in range(DW): reads(t)
    for s in range(NST):
        if s + 1 < NST:
            k.wait(vm=max(atok[s + 1], btok[s + 1]))
        k('s_barrier')
        if s + RB - 1 < NST: btok[s + RB - 1] = dma_b(s + RB - 1)
        if s + RA - 1 < NST: atok[s + RA - 1] = dma_a(s + RA - 1)
        for u in range(4):
            t = 4 * s + u
            A = AFR + 4 * (t % DW); W = WFR + 8 * (t % DW)
            k.wait(lg=rtok[(t, 0)])
            k(mfma(vr(ACC, 16), vr(W), vr(A)))
            k.wait(lg=rtok[(t, 1)])
            k(mfma(vr(ACC + 16, 16), vr(W + 4), vr(A)))
            k(mfma4(vr(S1), vr(ONES, 2), vr(A, 2)))
            k(mfma4(vr(S2), vr(A, 2), vr(A, 2)))
            k(mfma4(vr(S1 + 4), vr(ONES, 2), vr(A + 2, 2)))
            k(mfma4(vr(S2 + 4), vr(A + 2, 2), vr(A + 2, 2)))
            lab = f'L_k1_cs{t}'
            k(f's_cmp_lg_u32 s{S_W}, {u}\ns_cbranch_scc1 {lab}')
            for q in range(4): k(mfma4(vr(C0 + 4 * q), vr(ONES, 2), vr(W + 2 * q, 2)))
            k.p.label(lab)
            if t + DW < 4 * NST: reads(t + DW)
    T = 124
    NMEAN, RSTD, CA, CB, CONE = 128, 130, 132, 134, 136
    k(f'v_add_f32 v{S1}, v{S1}, v{S1+4}')
    for i in range(4): k(f'v_add_f32 v{S2+i}, v{S2+i}, v{S2+4+i}')
    k(f'''v_and_b32 v8, 3, v1
v_cmp_eq_u32 vcc, 1, v8
v_cndmask_b32 v{S2}, v{S2}, v{S2+1}, vcc
v_cmp_eq_u32 vcc, 2, v8
v_cndmask_b32 v{S2}, v{S2}, v{S2+2}, vcc
v_cmp_eq_u32 vcc, 3, v8
v_cndmask_b32 v{S2}, v{S2}, v{S2+3}, vcc''')
    k(f'v_add_f32 v{C0}, v{C0}, v{C0+4}\nv_add_f32 v{C0+8}, v{C0+8}, v{C0+12}')
    half_sum(k, S1, T); half_sum(k, S2, T + 1); half_sum(k, C0, T + 2); half_sum(k, C0 + 8, T + 3)
    k(f'''v_cmp_gt_u32 vcc, 32, v1
v_cndmask_b32 v{C0}, v{C0+8}, v{C0}, vcc
v_lshlrev_b32 v8, 2, v0
v_add_u32 v8, {CSL}, v8''')
    k.lds(f'ds_write_b32 v8, v{C0}')
    k(f'''v_mul_f32 v{S1}, {f32(1.0/1024)}, v{S1}
v_mul_f32 v{S2}, {f32(1.0/1024)}, v{S2}
v_fma_f32 v{S2}, -v{S1}, v{S1}, v{S2}
v_add_f32 v{S2}, {f32(1e-5)}, v{S2}
v_rsq_f32 v{RSTD}, v{S2}
v_sub_f32 v{NMEAN}, 0, v{S1}
v_mov_b32 v{CA}, {f32(GA)}
v_mov_b32 v{CB}, {f32(GB)}
v_mov_b32 v{CONE}, 1.0
s_waitcnt lgkmcnt(0)
s_barrier''')
    k(f'''v_lshrrev_b32 v10, 5, v1
v_lshlrev_b32 v10, 4, v10
v_add_u32 v10, {CSL}, v10''')
    CS = 140
    PT = 172
    for w in range(4):
        dst = CS if w == 0 else PT
        for nb in range(2):
            for gq in range(4):
                k.lds(f'ds_read_b128 {vr(dst+16*nb+4*gq)}, v10 offset:{w*256 + nb*128 + gq*32}')
        if w > 0:
            k('s_waitcnt lgkmcnt(0)')
            for e in range(16): k(f'v_pk_add_f32 {vr(CS+2*e,2)}, {vr(CS+2*e,2)}, {vr(PT+2*e,2)}')
    k(f'''s_lshr_b32 s14, s{S_J}, 2
s_lshr_b32 s15, s14, 1
s_add_u32 s15, s15, 1
s_and_b32 s14, s14, 1
s_sub_u32 s40, 0, s15
s_cmp_eq_u32 s14, 0
s_cselect_b32 s15, s15, s40
s_lshl_b32 s14, s13, 5
s_add_u32 s14, s14, s15
v_and_b32 v8, 31, v1
v_add_u32 v8, s14, v8
v_mov_b32 v11, 2048
v_cmp_gt_u32 s[42:43], v11, v8
v_and_b32 v8, 2047, v8
v_lshrrev_b32 v9, 5, v8
v_lshlrev_b32 v9, 16, v9
v_and_b32 v8, 31, v8
v_and_b32 v11, 32, v1
v_add_u32 v8, v8, v11
v_lshlrev_b32 v8, 4, v8
v_add_u32 v8, v8, v9
s_lshl_b32 s14, s{S_J}, 12''')
    if H_OFF: k(f's_add_u32 s14, s14, {H_OFF}')
    OUT = 204; TMP = 220
    gelu_pairs(k, [ACC + 2 * e for e in range(16)], [CS + 2 * e for e in range(16)], NMEAN, RSTD, CA, CB, CONE, TMP, [OUT + e for e in range(16)])
    for e in range(16): k(f'v_cndmask_b32 v{OUT+e}, 0, v{OUT+e}, s[42:43]')
    for q in range(4): k.vm(f'buffer_store_dwordx4 {vr(OUT+4*q)}, v8, {sr(28)}, s14 offen offset:{q*1024}')
    footer(k, 256, 0)
    k.lds_bytes = CSL + 1024
    return k

def build(kernels, path):
    hdr = open('standalone__mixer_s_mlp__prompt.s.ref').read().split('\n')
    o = [l for l in hdr if l.startswith('; Kernarg') or l.startswith(';   offset')]
    for k in kernels:
        o.append(f'; @launch kernel={k.name} grid=(256,1,1) block=(256,1,1) lds={k.lds_bytes}')
    o.append('.amdgcn_target "amdgcn-amd-amdhsa--gfx950"')
    o.append('.text')
    for k in kernels:
        k.p.fix_hazards()
        o.append(k.p.text())
    o.append('.section .rodata,"a"')
    for k in kernels:
        o.append('.p2align 6')
        o.append(k.desc)
    open(path, 'w').write('\n'.join(o) + '\n')

if __name__ == '__main__':
    ks = [gen_k1(), gen_k2(), gen_k3(), gen_k4()]
    out = sys.argv[1] if len(sys.argv) > 1 else 'standalone__mixer_s_mlp__prompt.s'
    build(ks, out)
    for k in ks: print(k.name, dict(k.p.count()), 'lds', k.lds_bytes)
```
